```python
import torch

def _softmax(x, axis=-1):
    return torch.softmax(x, dim=axis)
def _gelu(x):
    return torch.nn.functional.gelu(x, approximate="tanh")
def _silu(x):
    return torch.nn.functional.silu(x)
def _sigmoid(x):
    return torch.sigmoid(x)
def _layernorm(x, axis=-1, eps=1e-5):
    m = x.mean(dim=axis, keepdim=True)
    v = x.var(dim=axis, keepdim=True, unbiased=False)
    return (x - m) / torch.sqrt(v + eps)
def _scatter_add(tgt, idx, src, axis=0):
    return tgt.clone().index_add_(axis, idx, src)
def _segment_sum(src, seg, n):
    out = torch.zeros((n,) + src.shape[1:], dtype=src.dtype)
    return out.index_add_(0, seg, src)
def _pad(x, pw):
    flat = tuple(v for pair in reversed(pw) for v in pair)
    return torch.nn.functional.pad(x, flat)

kernel_name = 'standalone__softmax_full_bidir__sampling'

def setup_inputs():

    _w = (lambda a: (lambda t: t.to(torch.bfloat16) if t.is_floating_point() else t)(torch.as_tensor(a)))
    B, H, Sq, Skv, Dh = 8, 16, 4, 2048, 256
    return {
        "q": _w((lambda *s: torch.randn(*s, dtype=torch.bfloat16) * 0.8)(B, H, Sq, Dh)),
        "k": _w((lambda *s: torch.randn(*s, dtype=torch.bfloat16) * 0.8)(B, H, Skv, Dh)),
        "v": _w((lambda *s: torch.randn(*s, dtype=torch.bfloat16) * 0.05)(B, H, Skv, Dh)),
    }

def reference(q, k, v):
    scale = q.shape[-1] ** -0.5
    scores = torch.einsum('bhqd,bhkd->bhqk', q, k) * scale
    attn = _softmax(scores, axis=-1)
    return torch.einsum('bhqk,bhkd->bhqd', attn, v)
```

```python
import sys
KNAME = "standalone__softmax_full_bidir__sampling_kernel"

def gen(D=6, stamps=False, ldflags="nt", sleep_h=8, pre_sleep=100, poll_sleep=32, skip_perm=False, skip_mfma=False, skip_k=False, nohelp=False, noflag=False, nopay=False, stfl="sc1", ldfl="sc1"):
    o = []
    SPIN = 400000
    a = o.append
    LDS_P = 0
    LDS_PO = 16384
    LDS_ML = 32768
    LDS_FLAG = 33024
    LDS_SIZE = 33280
    vK, vV, vP = 1, 2, 3
    vQ = 4
    vD = 12
    vS = 20
    vB = 36
    vPA = 52
    vT = 54
    vR = 64
    vA = 128
    NV = 160
    slot = lambda i: f"v[{vR+4*(i%16)}:{vR+4*(i%16)+3}]"
    slotr = lambda i, u: f"v{vR+4*(i%16)+u}"
    sW, sH, sC = 16, 17, 18
    srdK, srdV, srdQ, srdO = 20, 24, 28, 32
    sOffK, sOffV, sIt, sT0, sT1 = 36, 37, 38, 39, 42
    sSelLo, sSelHi = 40, 41
    sCc = 43
    srd = lambda b: f"s[{b}:{b+3}]"
    fl = (" " + ldflags) if ldflags else ""

    a(f"; @launch grid=(256,1,1) block=(320,1,1) lds={LDS_SIZE}")
    a('.amdgcn_target "amdgcn-amd-amdhsa--gfx950"')
    a(".text")
    a(f".globl {KNAME}")
    a(".p2align 8")
    a(f".type {KNAME},@function")
    a(f"{KNAME}:")
    a("  s_cmp_ge_u32 s2, 256")
    a("  s_cbranch_scc1 L_end")
    a("  s_load_dwordx4 s[4:7], s[0:1], 0")
    a("  s_load_dwordx4 s[8:11], s[0:1], 16")
    a("  s_load_dwordx4 s[12:15], s[0:1], 32")
    if stamps:
        a("  s_memrealtime s[60:61]")
    a("  v_lshrrev_b32 v1, 6, v0")
    a("  v_and_b32 v0, 63, v0")
    a(f"  s_and_b32 s{sH}, s2, 127")
    a(f"  v_readfirstlane_b32 s{sW}, v1")
    a(f"  s_lshr_b32 s{sC}, s2, 7")
    a("  s_nop 1")
    a(f"  s_cmp_eq_u32 s{sW}, 4")
    a("  s_cbranch_scc1 L_helper")
    a(f"  v_lshrrev_b32 v{vT}, 4, v0")
    a(f"  v_bfe_u32 v{vT+1}, v0, 2, 2")
    a(f"  v_and_b32 v{vT+2}, 3, v0")
    a(f"  v_lshlrev_b32 v{vT+3}, 6, v{vT}")
    a(f"  v_lshl_add_u32 v{vK}, v{vT+1}, 9, v{vT+3}")
    a(f"  v_lshl_add_u32 v{vK}, v{vT+2}, 4, v{vK}")
    a(f"  v_lshl_add_u32 v{vT+4}, v{vT+2}, 9, v{vT+3}")
    a(f"  v_lshl_add_u32 v{vT+4}, v{vT+1}, 4, v{vT+4}")
    a(f"  s_lshl_b32 s{sT0}, s{sW}, 12")
    a(f"  v_add_u32 v{vK}, s{sT0}, v{vK}")
    a(f"  v_and_b32 v{vT+5}, 15, v0")
    a(f"  v_lshlrev_b32 v{vV}, 9, v{vT}")
    a(f"  v_lshl_add_u32 v{vV}, v{vT+5}, 4, v{vV}")
    a(f"  s_lshl_b32 s{sT1}, s{sC}, 8")
    a(f"  s_add_u32 s{sT1}, s{sT1}, s{sT0}")
    a(f"  v_add_u32 v{vV}, s{sT1}, v{vV}")
    a(f"  v_lshlrev_b32 v{vP}, 3, v0")
    a(f"  v_add_u32 v{vP}, s{sT0}, v{vP}")
    a("  s_waitcnt lgkmcnt(0)")
    a(f"  s_lshl_b32 s{sT0}, s{sH}, 20")
    a(f"  s_lshl_b32 s{sT1}, s{sC}, 19")
    a(f"  s_add_u32 s{sT1}, s{sT1}, s{sT0}")
    a(f"  s_add_u32 s{srdK}, s6, s{sT1}")
    a(f"  s_addc_u32 s{srdK+1}, s7, 0")
    a(f"  s_and_b32 s{srdK+1}, s{srdK+1}, 0xffff")
    a(f"  s_mov_b32 s{srdK+2}, 0x80000")
    a(f"  s_mov_b32 s{srdK+3}, 0x20000")
    a(f"  s_lshl_b32 s{sT1}, s{sH}, 11")
    a(f"  s_add_u32 s{srdQ}, s4, s{sT1}")
    a(f"  s_addc_u32 s{srdQ+1}, s5, 0")
    a(f"  s_and_b32 s{srdQ+1}, s{srdQ+1}, 0xffff")
    a(f"  s_mov_b32 s{srdQ+2}, 2048")
    a(f"  s_mov_b32 s{srdQ+3}, 0x20000")
    a(f"  s_mov_b32 s{sOffK}, 0")
    a(f"  buffer_load_dwordx4 v[{vQ}:{vQ+3}], v{vT+4}, {srd(srdQ)}, 0 offen")
    a(f"  buffer_load_dwordx4 v[{vQ+4}:{vQ+7}], v{vT+4}, {srd(srdQ)}, 0 offen offset:256")
    def issueK(idx):
        imm = [0, 256, 2048, 2304][idx % 4]
        a(f"  buffer_load_dwordx4 {slot(idx)}, v{vK}, {srd(srdK)}, s{sOffK} offen offset:{imm}{fl}")
        if idx % 4 == 3:
            a(f"  s_add_u32 s{sOffK}, s{sOffK}, 0x4000")
    def issueV(idx, inloop):
        imm = (idx & 1) * 2048
        a(f"  buffer_load_dwordx4 {slot(idx)}, v{vV}, {srd(srdV)}, s{sOffV} offen offset:{imm}{fl}")
        if idx & 1:
            a(f"  s_add_u32 s{sOffV}, s{sOffV}, 0x4000")
        if inloop and idx % 16 == 15:
            a(f"  s_and_b32 s{sOffV}, s{sOffV}, 0xfffff")
            a(f"  s_cmp_eq_u32 s{sIt}, 7")
            a(f"  s_cselect_b32 s{srdV+2}, 0, s{srdV+2}")
    for i in range(D):
        issueK(i)
    a(f"  s_add_u32 s{srdV}, s8, s{sT0}")
    a(f"  s_addc_u32 s{srdV+1}, s9, 0")
    a(f"  s_and_b32 s{srdV+1}, s{srdV+1}, 0xffff")
    a(f"  s_mov_b32 s{srdV+2}, 0x100000")
    a(f"  s_mov_b32 s{srdV+3}, 0x20000")
    a(f"  s_add_u32 s{srdO}, s10, s{sT1}")
    a(f"  s_addc_u32 s{srdO+1}, s11, 0")
    a(f"  s_and_b32 s{srdO+1}, s{srdO+1}, 0xffff")
    a(f"  s_mov_b32 s{srdO+2}, 2048")
    a(f"  s_mov_b32 s{srdO+3}, 0x20000")
    a(f"  s_lshl_b32 s{sOffV}, s{sC}, 19")
    a(f"  s_mov_b32 s{sSelLo}, 0x05040100")
    a(f"  s_mov_b32 s{sSelHi}, 0x07060302")
    a(f"  s_mov_b32 s{sCc}, 0x3db8aa3b")
    for i in range(32):
        a(f"  v_mov_b32 v{vA+i}, 0")
    a("  s_barrier")
    def kiter(peeled):
        for n in range(32):
            a(f"  s_waitcnt vmcnt({D-1})")
            idx = n + D
            if peeled and idx >= 32:
                issueV(idx - 32, False)
            else:
                issueK(idx)
            if (n & 1) and not skip_k:
                gi = n >> 1; k = gi & 3; G = gi >> 2
                a(f"  v_mfma_f32_16x16x32_bf16 v[{vD}:{vD+3}], {slot(n-1)}, v[{vQ}:{vQ+3}], 0")
                a(f"  v_mfma_f32_16x16x32_bf16 v[{vD}:{vD+3}], {slot(n)}, v[{vQ+4}:{vQ+7}], v[{vD}:{vD+3}]")
                a("  s_nop 7")
                m = vS + k
                ps = [p for p in range(4) if p != G]
                bm = 1 << G
                for t, p in enumerate(ps):
                    rot = (4 * (G - p)) % 16
                    src1 = f"v{vD+G}" if t == 0 else f"v{m}"
                    if t: a("  s_nop 1")
                    a(f"  v_add_f32_dpp v{m}, v{vD+p}, {src1} row_ror:{rot} row_mask:0xf bank_mask:0x{bm:x}")
    a(f"  s_mov_b32 s{sIt}, 0")
    a("L_kloop:")
    kiter(False)
    for i in range(4): a(f"  v_mov_b32 v{vS+12+i}, v{vS+8+i}")
    for i in range(4): a(f"  v_mov_b32 v{vS+8+i}, v{vS+4+i}")
    for i in range(4): a(f"  v_mov_b32 v{vS+4+i}, v{vS+i}")
    a(f"  s_add_u32 s{sIt}, s{sIt}, 1")
    a(f"  s_cmp_lt_u32 s{sIt}, 3")
    a("  s_cbranch_scc1 L_kloop")
    kiter(True)
    if stamps:
        a("  s_memrealtime s[62:63]")
    S = lambda sb, k: vS + 4 * (3 - sb) + k
    mx, t1 = vT, vT + 1
    a(f"  v_max3_f32 v{mx}, v{vS}, v{vS+1}, v{vS+2}")
    for i in range(3, 15, 2):
        a(f"  v_max3_f32 v{mx}, v{mx}, v{vS+i}, v{vS+i+1}")
    a(f"  v_max_f32 v{mx}, v{mx}, v{vS+15}")
    def xreduce(op, r, tmp):
        a("  s_nop 1")
        a(f"  {op}_dpp v{r}, v{r}, v{r} row_ror:4 row_mask:0xf bank_mask:0xf")
        a("  s_nop 1")
        a(f"  {op}_dpp v{r}, v{r}, v{r} row_ror:8 row_mask:0xf bank_mask:0xf")
        a(f"  v_mov_b32 v{tmp}, v{r}")
        a("  s_nop 1")
        a(f"  v_permlane16_swap_b32 v{r}, v{tmp}")
        a("  s_nop 1")
        a(f"  {op} v{r}, v{r}, v{tmp}")
        a(f"  v_mov_b32 v{tmp}, v{r}")
        a("  s_nop 1")
        a(f"  v_permlane32_swap_b32 v{r}, v{tmp}")
        a("  s_nop 1")
        a(f"  {op} v{r}, v{r}, v{tmp}")
    xreduce("v_max_f32", mx, t1)
    mc, ls = vT + 2, vT + 3
    a(f"  v_mul_f32 v{mc}, s{sCc}, v{mx}")
    for i in range(16):
        a(f"  v_fma_f32 v{vS+i}, v{vS+i}, s{sCc}, -v{mc}")
    for i in range(16):
        a(f"  v_exp_f32 v{vS+i}, v{vS+i}")
    a("  s_nop 0")
    a(f"  v_add_f32 v{ls}, v{vS}, v{vS+1}")
    for i in range(2, 16):
        a(f"  v_add_f32 v{ls}, v{ls}, v{vS+i}")
    for sb in range(4):
        a(f"  v_cvt_pk_bf16_f32 v{vB+2*sb}, v{S(sb,0)}, v{S(sb,1)}")
        a(f"  v_cvt_pk_bf16_f32 v{vB+2*sb+1}, v{S(sb,2)}, v{S(sb,3)}")
    for sb in range(4):
        a(f"  ds_write_b64 v{vP}, v[{vB+2*sb}:{vB+2*sb+1}] offset:{sb*512}")
    xreduce("v_add_f32", ls, t1)
    a(f"  v_and_b32 v{t1}, 3, v0")
    a(f"  s_lshl_b32 s{sT0}, s{sW}, 5")
    a(f"  s_add_u32 s{sT0}, s{sT0}, {LDS_ML}")
    a(f"  v_lshl_add_u32 v{t1}, v{t1}, 3, s{sT0}")
    a(f"  ds_write_b64 v{t1}, v[{mc}:{ls}]")
    a(f"  v_mov_b32 v{t1}, {LDS_FLAG}")
    a(f"  v_mov_b32 v{mx}, 1")
    a("  s_waitcnt lgkmcnt(0)")
    a(f"  ds_add_u32 v{t1}, v{mx}")
    fO, fP = vT + 8, vT + 9
    def reduce_write(part_off_sgpr_expr, f):
        for e in range(8):
            x = vA + 4 * e
            a(f"  v_permlane32_swap_b32 v{x}, v{x+2}")
            a(f"  v_permlane32_swap_b32 v{x+1}, v{x+3}")
        a("  s_nop 0")
        for e in range(8):
            x = vA + 4 * e
            a(f"  v_add_f32 v{x}, v{x}, v{x+2}")
            a(f"  v_add_f32 v{x+1}, v{x+1}, v{x+3}")
        a("  s_nop 0")
        for e in range(8):
            x = vA + 4 * e
            a(f"  v_permlane16_swap_b32 v{x}, v{x+1}")
        a("  s_nop 0")
        for e in range(8):
            x = vA + 4 * e
            a(f"  v_add_f32 v{x}, v{x}, v{x+1}")
        for e in range(8):
            x = vA + 4 * e
            a(f"  v_mul_f32 v{vB+e}, v{x}, v{f}")
        a(f"  s_lshl_b32 s{sT0}, s{sW}, 11")
        a(f"  s_add_u32 s{sT0}, s{sT0}, {part_off_sgpr_expr}")
        a(f"  v_lshl_add_u32 v{vT}, v0, 5, s{sT0}")
        a(f"  ds_write_b128 v{vT}, v[{vB}:{vB+3}]")
        a(f"  ds_write_b128 v{vT}, v[{vB+4}:{vB+7}] offset:16")
    a(f"  s_mov_b32 s{sIt}, 0")
    a("L_vloop:")
    a(f"  s_cmp_lg_u32 s{sIt}, 4")
    a("  s_cbranch_scc1 L_noswitch")
    if stamps: a("  s_memrealtime s[66:67]")
    a(f"  v_mov_b32 v{vT}, {LDS_FLAG}")
    a(f"  s_mov_b32 s{sT1}, 0")
    a("L_wait_ready:")
    a(f"  s_add_u32 s{sT1}, s{sT1}, 1")
    a(f"  s_cmp_gt_u32 s{sT1}, {SPIN}")
    a("  s_cbranch_scc1 L_ready")
    a(f"  ds_read_b32 v{vT+1}, v{vT} offset:4")
    a("  s_waitcnt lgkmcnt(0)")
    a(f"  v_readfirstlane_b32 s{sT0}, v{vT+1}")
    a("  s_nop 0")
    a(f"  s_cmp_eq_u32 s{sT0}, 1")
    a("  s_cbranch_scc1 L_ready")
    a("  s_sleep 2")
    a("  s_branch L_wait_ready")
    a("L_ready:")
    if stamps: a("  s_memrealtime s[68:69]")
    a(f"  v_lshrrev_b32 v{vT}, 4, v0")
    a(f"  v_lshlrev_b32 v{vT}, 3, v{vT}")
    a(f"  v_add_u32 v{vT}, {LDS_ML}, v{vT}")
    for i in range(8):
        a(f"  ds_read_b64 v[{vB+2*i}:{vB+2*i+1}], v{vT} offset:{i*32}")
    a(f"  s_lshl_b32 s{sT0}, s{sW}, 5")
    a(f"  v_add_u32 v{vT+1}, s{sT0}, v{vT}")
    a(f"  ds_read_b32 v{fO}, v{vT+1}")
    a(f"  ds_read_b32 v{fP}, v{vT+1} offset:128")
    a("  s_waitcnt lgkmcnt(0)")
    M, L = vT + 2, vT + 3
    a(f"  v_max3_f32 v{M}, v{vB}, v{vB+2}, v{vB+4}")
    a(f"  v_max3_f32 v{M}, v{M}, v{vB+6}, v{vB+8}")
    a(f"  v_max3_f32 v{M}, v{M}, v{vB+10}, v{vB+12}")
    a(f"  v_max_f32 v{M}, v{M}, v{vB+14}")
    for i in range(8):
        a(f"  v_sub_f32 v{vB+2*i}, v{vB+2*i}, v{M}")
    a(f"  v_sub_f32 v{fO}, v{fO}, v{M}")
    a(f"  v_sub_f32 v{fP}, v{fP}, v{M}")
    for i in range(8):
        a(f"  v_exp_f32 v{vB+2*i}, v{vB+2*i}")
    a(f"  v_exp_f32 v{fO}, v{fO}")
    a(f"  v_exp_f32 v{fP}, v{fP}")
    a(f"  v_mul_f32 v{L}, v{vB}, v{vB+1}")
    for i in range(1, 8):
        a(f"  v_fmac_f32 v{L}, v{vB+2*i}, v{vB+2*i+1}")
    a(f"  v_rcp_f32 v{L}, v{L}")
    a("  s_nop 0")
    a(f"  v_mul_f32 v{fO}, v{fO}, v{L}")
    a(f"  v_mul_f32 v{fP}, v{fP}, v{L}")
    reduce_write(LDS_PO, fO)
    for i in range(32):
        a(f"  v_mov_b32 v{vA+i}, 0")
    a("L_noswitch:")
    a(f"  ds_read_b64 v[{vPA}:{vPA+1}], v{vP}")
    a(f"  v_add_u32 v{vP}, 512, v{vP}")
    for n in range(16):
        a(f"  s_waitcnt vmcnt({D-1})")
        issueV(n + D, True)
        if n & 1:
            kp = (n >> 1) & 1
            for e in range(0 if skip_perm else 8):
                u = e >> 1
                sel = sSelHi if (e & 1) else sSelLo
                a(f"  v_perm_b32 v{vB+2*e+kp}, {slotr(n,u)}, {slotr(n-1,u)}, s{sel}")
            if (n & 3) == 3:
                G = n >> 2
                if G == 0:
                    a("  s_waitcnt lgkmcnt(0)")
                for e in range(0 if skip_mfma else 8):
                    a(f"  v_mfma_f32_4x4x4_16b_bf16 v[{vA+4*e}:{vA+4*e+3}], v[{vPA}:{vPA+1}], v[{vB+2*e}:{vB+2*e+1}], v[{vA+4*e}:{vA+4*e+3}] cbsz:2 abid:{G}")
    a(f"  s_add_u32 s{sIt}, s{sIt}, 1")
    a(f"  s_cmp_lt_u32 s{sIt}, 8")
    a("  s_cbranch_scc1 L_vloop")
    a("  s_nop 7")
    reduce_write(LDS_PO + 4 * 2048, fP)
    a("  s_waitcnt lgkmcnt(0)")
    a("  s_barrier")
    a(f"  s_lshl_b32 s{sT0}, s{sW}, 9")
    a(f"  s_add_u32 s{sT1}, s{sT0}, {LDS_PO}")
    a(f"  v_lshl_add_u32 v{vT}, v0, 3, s{sT1}")
    for i in range(8):
        a(f"  ds_read_b64 v[{vB+2*i}:{vB+2*i+1}], v{vT} offset:{i*2048}")
    a(f"  s_lshl_b32 s{sT1}, s{sC}, 8")
    a(f"  s_add_u32 s{sT0}, s{sT0}, s{sT1}")
    a(f"  v_lshl_add_u32 v{vT+1}, v0, 2, s{sT0}")
    for h in range(2):
        pass
    a("  s_waitcnt lgkmcnt(4)")
    a(f"  v_add_f32 v{vB}, v{vB}, v{vB+2}")
    a(f"  v_add_f32 v{vB+1}, v{vB+1}, v{vB+3}")
    a(f"  v_add_f32 v{vB+4}, v{vB+4}, v{vB+6}")
    a(f"  v_add_f32 v{vB+5}, v{vB+5}, v{vB+7}")
    a("  s_waitcnt lgkmcnt(0)")
    a(f"  v_add_f32 v{vB+8}, v{vB+8}, v{vB+10}")
    a(f"  v_add_f32 v{vB+9}, v{vB+9}, v{vB+11}")
    a(f"  v_add_f32 v{vB+12}, v{vB+12}, v{vB+14}")
    a(f"  v_add_f32 v{vB+13}, v{vB+13}, v{vB+15}")
    a(f"  v_add_f32 v{vB}, v{vB}, v{vB+4}")
    a(f"  v_add_f32 v{vB+1}, v{vB+1}, v{vB+5}")
    a(f"  v_add_f32 v{vB+8}, v{vB+8}, v{vB+12}")
    a(f"  v_add_f32 v{vB+9}, v{vB+9}, v{vB+13}")
    a(f"  v_add_f32 v{vB}, v{vB}, v{vB+8}")
    a(f"  v_add_f32 v{vB+1}, v{vB+1}, v{vB+9}")
    a(f"  v_cvt_pk_bf16_f32 v{vB}, v{vB}, v{vB+1}")
    a(f"  buffer_store_dword v{vB}, v{vT+1}, {srd(srdO)}, 0 offen")
    if stamps:
        a("  s_memrealtime s[64:65]")
        a("  s_waitcnt lgkmcnt(0)")
        a(f"  s_cmp_lg_u32 s{sW}, 0")
        a("  s_cbranch_scc1 L_end")
        a("  s_add_u32 s14, s14, 0x10000000"); a("  s_addc_u32 s15, s15, 0")
        a("  s_lshl_b32 s13, s2, 5"); a("  v_mov_b32 v3, s13")
        a("  v_mov_b32 v4, s60"); a("  v_mov_b32 v5, s61"); a("  v_mov_b32 v6, s64"); a("  v_mov_b32 v7, s65")
        a("  s_mov_b64 exec, 1")
        a("  global_store_dwordx4 v3, v[4:7], s[14:15]")
        a("  v_mov_b32 v8, s62"); a("  v_mov_b32 v9, s63"); a("  s_getreg_b32 s42, hwreg(HW_REG_XCC_ID)"); a("  s_getreg_b32 s43, hwreg(HW_REG_HW_ID)")
        a("  s_and_b32 s42, s42, 15"); a("  v_mov_b32 v10, s42"); a("  v_mov_b32 v11, s43")
        a("  global_store_dwordx4 v3, v[8:11], s[14:15] offset:16")
        a("  s_lshl_b32 s13, s2, 6"); a("  s_add_u32 s13, s13, 65536"); a("  v_mov_b32 v3, s13")
        a("  v_mov_b32 v4, s66"); a("  v_mov_b32 v5, s67"); a("  v_mov_b32 v6, s68"); a("  v_mov_b32 v7, s69")
        a("  global_store_dwordx4 v3, v[4:7], s[14:15]")
    a("  s_endpgm")
    a("L_helper:")
    a(f"  v_mov_b32 v1, {LDS_FLAG}")
    a("  v_mov_b32 v2, 0")
    a("  v_mov_b32 v3, 0")
    a("  ds_write_b64 v1, v[2:3]")
    a("  s_waitcnt lgkmcnt(0)")
    a("  s_lshl_b32 s39, s2, 14")
    a("  s_add_u32 s20, s14, s39")
    a("  s_addc_u32 s21, s15, 0")
    a("  s_and_b32 s21, s21, 0xffff")
    a("  s_mov_b32 s22, 16384")
    a("  s_mov_b32 s23, 0x20000")
    a("  s_xor_b32 s40, s2, 128")
    a("  s_lshl_b32 s39, s40, 14")
    a("  s_add_u32 s24, s14, s39")
    a("  s_addc_u32 s25, s15, 0")
    a("  s_and_b32 s25, s25, 0xffff")
    a("  s_mov_b32 s26, 16384")
    a("  s_mov_b32 s27, 0x20000")
    a("  v_lshlrev_b32 v4, 4, v0")
    a("  v_add_u32 v5, 4096, v4")
    a("  v_lshlrev_b32 v6, 3, v0")
    a("  s_barrier")
    if nohelp:
        a("  v_mov_b32 v2, 1"); a("  ds_write_b32 v1, v2 offset:4"); a("  s_waitcnt lgkmcnt(0)"); a("  s_barrier"); a("  s_endpgm")
    a("  s_mov_b32 s44, 0")
    a("L_h_wait1:")
    a("  s_add_u32 s44, s44, 1")
    a(f"  s_cmp_gt_u32 s44, {SPIN}")
    a("  s_cbranch_scc1 L_h_go1")
    a("  ds_read_b32 v2, v1")
    a("  s_waitcnt lgkmcnt(0)")
    a("  v_readfirstlane_b32 s39, v2")
    a("  s_nop 0")
    a("  s_cmp_eq_u32 s39, 256")
    a("  s_cbranch_scc1 L_h_go1")
    a(f"  s_sleep {sleep_h}")
    a("  s_branch L_h_wait1")
    a("L_h_go1:")
    if stamps: a("  s_memrealtime s[46:47]")
    for w in range(4):
        for hh in range(2):
            r = 8 + 4 * (2 * w + hh)
            a(f"  ds_read_b128 v[{r}:{r+3}], v4 offset:{w*4096 + hh*1024}")
    a(f"  v_add_u32 v7, {LDS_ML}, v6")
    a("  ds_read_b64 v[40:41], v7")
    a("  s_waitcnt lgkmcnt(0)")
    for i in range(0 if nopay else 8):
        r = 8 + 4 * i
        va = "v4" if i < 4 else "v5"
        a(f"  buffer_store_dwordx4 v[{r}:{r+3}], {va}, s[20:23], 0 offen offset:{(i%4)*1024} {stfl}")
    a("  s_mov_b64 exec, 0xffff")
    a("  v_add_u32 v7, 8192, v6")
    a("  buffer_store_dwordx2 v[40:41], v7, s[20:23], 0 offen sc1")
    a("  s_mov_b64 exec, 1")
    a("  s_lshr_b32 s39, s2, 2"); a("  s_lshl_b32 s39, s39, 2")
    a("  v_mov_b32 v2, s39")
    a("  s_and_b32 s41, s2, 3"); a("  s_lshl_b32 s41, s41, 3"); a("  s_lshl_b32 s41, 1, s41")
    a("  v_mov_b32 v3, s41")
    a("  s_waitcnt vmcnt(0)")
    if stamps: a("  s_memrealtime s[48:49]")
    if not noflag: a("  global_atomic_add v2, v3, s[12:13] sc1")
    a("  s_lshr_b32 s39, s40, 2"); a("  s_lshl_b32 s39, s39, 2")
    a("  v_mov_b32 v2, s39")
    a("  s_and_b32 s41, s40, 3"); a("  s_lshl_b32 s41, s41, 3")
    a("  s_mov_b32 s44, 0")
    if pre_sleep: a(f"  s_sleep {pre_sleep}")
    a("L_h_wait2:")
    if noflag: a("  s_branch L_h_go2")
    a("  s_add_u32 s44, s44, 1")
    a(f"  s_cmp_gt_u32 s44, {SPIN}")
    a("  s_cbranch_scc1 L_h_go2")
    a("  global_load_dword v3, v2, s[12:13] sc1")
    a("  s_waitcnt vmcnt(0)")
    a("  v_readfirstlane_b32 s39, v3")
    a("  s_nop 0")
    a("  s_lshr_b32 s39, s39, s41")
    a("  s_and_b32 s39, s39, 0xff")
    a("  s_cmp_lg_u32 s39, 0")
    a("  s_cbranch_scc1 L_h_go2")
    a(f"  s_sleep {poll_sleep}")
    a("  s_branch L_h_wait2")
    a("L_h_go2:")
    if stamps: a("  s_memrealtime s[50:51]")
    a("  s_mov_b64 exec, -1")
    for i in range(0 if nopay else 8):
        r = 8 + 4 * i
        va = "v4" if i < 4 else "v5"
        a(f"  buffer_load_dwordx4 v[{r}:{r+3}], {va}, s[24:27], 0 offen offset:{(i%4)*1024} {ldfl}")
    a("  v_and_b32 v7, 15, v0"); a("  v_lshlrev_b32 v7, 3, v7")
    a("  v_add_u32 v42, 8192, v7")
    a("  buffer_load_dwordx2 v[40:41], v42, s[24:27], 0 offen sc1")
    a(f"  v_add_u32 v7, {LDS_ML+128}, v7")
    a("  s_waitcnt vmcnt(0)")
    for w in range(4):
        for hh in range(2):
            r = 8 + 4 * (2 * w + hh)
            a(f"  ds_write_b128 v4, v[{r}:{r+3}] offset:{w*4096 + 2048 + hh*1024}")
    a("  ds_write_b64 v7, v[40:41]")
    a("  v_mov_b32 v2, 1")
    a("  s_waitcnt lgkmcnt(0)")
    a("  ds_write_b32 v1, v2 offset:4")
    if stamps:
        a("  s_memrealtime s[52:53]")
        a("  s_waitcnt lgkmcnt(0)")
        a("  s_add_u32 s14, s14, 0x10000000"); a("  s_addc_u32 s15, s15, 0")
        a("  s_lshl_b32 s13, s2, 6"); a("  s_add_u32 s13, s13, 65536"); a("  v_mov_b32 v3, s13")
        a("  s_mov_b64 exec, 1")
        a("  v_mov_b32 v4, s46"); a("  v_mov_b32 v5, s47"); a("  v_mov_b32 v6, s48"); a("  v_mov_b32 v7, s49")
        a("  global_store_dwordx4 v3, v[4:7], s[14:15] offset:16")
        a("  v_mov_b32 v8, s50"); a("  v_mov_b32 v9, s51"); a("  v_mov_b32 v10, s52"); a("  v_mov_b32 v11, s53")
        a("  global_store_dwordx4 v3, v[8:11], s[14:15] offset:32")
        a("  s_mov_b64 exec, -1")
    a("  s_waitcnt lgkmcnt(0)")
    a("  s_barrier")
    a("L_end:")
    a("  s_endpgm")
    a('.section .rodata,"a"')
    a(".p2align 6")
    a(f".amdhsa_kernel {KNAME}")
    a(f"  .amdhsa_next_free_vgpr {NV}")
    a("  .amdhsa_next_free_sgpr 72")
    a(f"  .amdhsa_accum_offset {NV}")
    a("  .amdhsa_group_segment_fixed_size 0")
    a("  .amdhsa_kernarg_size 48")
    a("  .amdhsa_user_sgpr_count 2")
    a("  .amdhsa_user_sgpr_kernarg_segment_ptr 1")
    a("  .amdhsa_system_sgpr_workgroup_id_x 1")
    a(".end_amdhsa_kernel")
    return "\n".join(o) + "\n", LDS_SIZE

if __name__ == "__main__":
    kw = eval("dict(" + (sys.argv[2] if len(sys.argv) > 2 else "") + ")")
    s, lds = gen(**kw)
    open(sys.argv[1], "w").write(s)
```
